```python
import torch

def _softmax(x, axis=-1):
    return torch.softmax(x, dim=axis)
def _gelu(x):
    return torch.nn.functional.gelu(x, approximate="tanh")
def _silu(x):
    return torch.nn.functional.silu(x)
def _sigmoid(x):
    return torch.sigmoid(x)
def _layernorm(x, axis=-1, eps=1e-5):
    m = x.mean(dim=axis, keepdim=True)
    v = x.var(dim=axis, keepdim=True, unbiased=False)
    return (x - m) / torch.sqrt(v + eps)
def _scatter_add(tgt, idx, src, axis=0):
    return tgt.clone().index_add_(axis, idx, src)
def _segment_sum(src, seg, n):
    out = torch.zeros((n,) + src.shape[1:], dtype=src.dtype)
    return out.index_add_(0, seg, src)
def _pad(x, pw):
    flat = tuple(v for pair in reversed(pw) for v in pair)
    return torch.nn.functional.pad(x, flat)

kernel_name = 'recurrent_scan__mha_block_cached__mixer_s_mlp__prompt'

def setup_inputs():

    _w = (lambda a: (lambda t: t.to(torch.bfloat16) if t.is_floating_point() else t)(torch.as_tensor(a)))
    def _A_setup():
        B, Sq, D = 1, 2048, 576
        H, Sk, Dh = 32, 2048, 128
        return {
            "x": _w((lambda *s: torch.randn(*s, dtype=torch.bfloat16) * 0.05)(B, Sq, D)),
            "k_cache": _w((lambda *s: torch.randn(*s, dtype=torch.bfloat16) * 0.8)(B, H, Sk, Dh)),
            "v_cache": _w((lambda *s: torch.randn(*s, dtype=torch.bfloat16) * 0.8)(B, H, Sk, Dh)),
            "wq": _w((lambda *s: torch.randn(*s, dtype=torch.bfloat16) * 0.8)(D, H * Dh) * (D ** -0.5)),
            "wo": _w((lambda *s: torch.randn(*s, dtype=torch.bfloat16) * 0.8)(H * Dh, D) * ((H * Dh) ** -0.5)),
        }
    _A_in = _A_setup()

    def _B_setup():
        B, S, D, F = 1, 2048, 576, 4608
        return {
            "x":  _w((lambda *s: torch.randn(*s, dtype=torch.bfloat16) * 0.05)(B, S, D)),
            "w1": _w((lambda *s: torch.randn(*s, dtype=torch.bfloat16) * 3.2)(D, D) * (D ** -0.5)),
            "w2": _w((lambda *s: torch.randn(*s, dtype=torch.bfloat16) * 3.2)(D, D) * (D ** -0.5)),
            "w3": _w((lambda *s: torch.randn(*s, dtype=torch.bfloat16) * 3.2)(D, F) * (D ** -0.5)),
            "w4": _w((lambda *s: torch.randn(*s, dtype=torch.bfloat16) * 3.2)(F, D) * (F ** -0.5)),
        }
    _B_in = _B_setup()

    return {
        "A_x": _A_in["x"],
        "A_k_cache": _A_in["k_cache"],
        "A_v_cache": _A_in["v_cache"],
        "A_wq": _A_in["wq"],
        "A_wo": _A_in["wo"],
        "B_x": _B_in["x"],
        "B_w1": _B_in["w1"],
        "B_w2": _B_in["w2"],
        "B_w3": _B_in["w3"],
        "B_w4": _B_in["w4"],
    }

def reference(A_x, A_k_cache, A_v_cache, A_wq, A_wo, B_x, B_w1, B_w2, B_w3, B_w4):
    def _A_ref(x, k_cache, v_cache, wq, wo):
        B, Sq, D = x.shape
        H, Dh = 32, 128
        q = (lambda x, *d: x.permute(*d))((x @ wq).reshape(B, Sq, H, Dh), 0, 2, 1, 3)
        scores = torch.einsum("bhqd,bhkd->bhqk", q, k_cache) * (Dh ** -0.5)
        p = _softmax(scores, axis=-1)
        o = torch.einsum("bhqk,bhkd->bhqd", p, v_cache)
        return (lambda x, *d: x.permute(*d))(o, 0, 2, 1, 3).reshape(B, Sq, H * Dh) @ wo

    def _B_ref(x, w1, w2, w3, w4):
        B, S, D = x.shape
        h = _gelu(_layernorm(x, axis=-1) @ w1)
        c = D // 4
        g0 = _pad(h[:, :, 0*c:1*c], ((0, 0), (1, 0), (0, 0)))[:, :S, :]
        g1 = _pad(h[:, :, 1*c:2*c], ((0, 0), (0, 1), (0, 0)))[:, 1:, :]
        g2 = _pad(h[:, :, 2*c:3*c], ((0, 0), (2, 0), (0, 0)))[:, :S, :]
        g3 = _pad(h[:, :, 3*c:   ], ((0, 0), (0, 2), (0, 0)))[:, 2:, :]
        hs = torch.concatenate([g0, g1, g2, g3], axis=-1) @ w2
        x1 = x + hs
        h2 = _gelu(_layernorm(x1, axis=-1) @ w3) @ w4
        return x1 + h2

    x = A_x
    xn = _layernorm(x, axis=-1)
    s = _A_ref(xn, A_k_cache, A_v_cache, A_wq, A_wo)
    g = _silu(_B_ref(xn, B_w1, B_w2, B_w3, B_w4))
    return x + s * g
```

```python
import re

_REG = re.compile(r'^(-|\|)?(abs\()?([vas])(\d+)\)?\|?$')
_RNG = re.compile(r'^([vas])\[(\d+):(\d+)\]$')


def regs_of(tok):
    tok = tok.strip()
    m = _RNG.match(tok)
    if m:
        return [(m.group(1), i) for i in range(int(m.group(2)), int(m.group(3)) + 1)]
    m = _REG.match(tok)
    if m:
        return [(m.group(3), int(m.group(4)))]
    if tok in ('vcc', 'exec', 'm0', 'scc'):
        return [(tok, 0)]
    if tok in ('vcc_lo', 'vcc_hi'):
        return [('vcc', 0)]
    return []


TRANS = ('v_exp_f32', 'v_log_f32', 'v_rcp_f32', 'v_rsq_f32', 'v_sqrt_f32', 'v_sin_f32', 'v_cos_f32')


class Ins:
    __slots__ = ('text', 'op', 'rd', 'wr', 'cls', 'ws', 'srcC', 'passes', 'dpp', 'lds_dma', 'wide_store', 'data')

    def __init__(self, text):
        self.text = text
        t = text.split(';')[0].strip()
        self.rd, self.wr, self.cls, self.ws = [], [], 'other', 1
        self.srcC, self.passes, self.dpp, self.lds_dma, self.wide_store, self.data = [], 0, False, False, False, []
        if not t or t.endswith(':') or t.startswith('.'):
            self.op, self.cls, self.ws = '', 'label', 0
            return
        parts = t.split(None, 1)
        op = parts[0]
        for suf in ('_e32', '_e64', '_dpp'):
            if op.endswith(suf):
                if suf == '_dpp':
                    self.dpp = True
                op = op[:-len(suf)]
        self.op = op
        rest = parts[1] if len(parts) > 1 else ''
        ops = []
        for piece in rest.split(','):
            piece = piece.strip()
            if not piece:
                continue
            ops.append(piece)
        mods = []
        if ops:
            joined = rest
            joined = re.sub(r'quad_perm:\[[^\]]*\]', 'quad_perm', joined)
            joined = re.sub(r'hwreg\([^)]*\)', 'hwreg', joined)
            ops = [p.strip() for p in joined.split(',') if p.strip()]
            last = ops[-1].split()
            ops[-1] = last[0]
            mods = last[1:]
        R = [regs_of(o) for o in ops]
        flat = lambda L: [r for x in L for r in x]
        if op.startswith('v_mfma'):
            self.cls = 'mfma'
            self.wr = R[0]
            self.rd = flat(R[1:])
            self.srcC = R[3]
            self.passes = 8 if '32x32' in op else 4
            self.data = [R[1], R[2]]
        elif op.startswith('ds_read') or op.startswith('ds_bpermute') or op.startswith('ds_swizzle') or op.startswith('ds_permute'):
            self.cls = 'ds'
            self.wr = R[0]
            self.rd = flat(R[1:])
        elif op.startswith('ds_'):
            self.cls = 'ds'
            self.rd = flat(R)
        elif op.startswith('buffer_load') or op.startswith('global_load'):
            self.cls = 'vmem'
            if 'lds' in mods or 'lds' in op:
                self.lds_dma = True
                self.rd = flat(R) + [('m0', 0)]
            else:
                self.wr = R[0]
                self.rd = flat(R[1:])
        elif op.startswith('buffer_store') or op.startswith('global_store'):
            self.cls = 'vmem'
            self.rd = flat(R)
            d = R[0] if op.startswith('buffer') else R[1]
            if len(d) >= 3:
                self.wide_store = True
                self.data = d
        elif op.startswith('buffer_atomic') or op.startswith('global_atomic'):
            self.cls = 'vmem'
            self.rd = flat(R)
            if 'sc0' in mods:
                self.wr = R[0]
        elif op.startswith('buffer_'):
            self.cls = 'vmem'
        elif op.startswith('v_cmp'):
            self.cls = 'valu'
            self.wr = R[0] + ([('exec', 0)] if op.startswith('v_cmpx') else [])
            self.rd = flat(R[1:])
        elif op.startswith('v_permlane'):
            self.cls = 'valu'
            self.wr = flat(R)
            self.rd = flat(R)
        elif op.startswith('v_'):
            self.cls = 'valu'
            self.wr = list(R[0])
            self.rd = flat(R[1:])
            if op in ('v_add_co_u32', 'v_addc_co_u32', 'v_sub_co_u32', 'v_subb_co_u32'):
                self.wr = R[0] + R[1]
                self.rd = flat(R[2:])
            if op in ('v_fmac_f32', 'v_dot2c_f32_bf16', 'v_writelane_b32'):
                self.rd += R[0]
            if op == 'v_cndmask_b32' and len(R) == 3:
                self.rd += [('vcc', 0)]
        elif op == 's_nop':
            self.cls = 'nop'
            self.ws = int(ops[0], 0) + 1
        elif op in ('s_waitcnt', 's_barrier', 's_endpgm', 's_setprio', 's_sleep', 's_branch') or op.startswith('s_cbranch'):
            self.cls = 'sctl'
        elif op.startswith('s_cmp') or op.startswith('s_bitcmp'):
            self.cls = 'salu'
            self.rd = flat(R)
            self.wr = [('scc', 0)]
        elif op.startswith('s_load') or op.startswith('s_memtime') or op.startswith('s_memrealtime') or op.startswith('s_atomic'):
            self.cls = 'smem'
            self.wr = R[0]
            self.rd = flat(R[1:])
        elif op.startswith('s_'):
            self.cls = 'salu'
            self.wr = list(R[0])
            self.rd = flat(R[1:])
            if 'saveexec' in op:
                self.wr += [('exec', 0)]
        else:
            raise ValueError('unknown instruction: ' + text)


def check_hazards(ins, name=''):
    errs = []
    n = len(ins)
    W = 24
    for j in range(n):
        c = ins[j]
        if c.cls in ('label',):
            continue
        dist = 0
        crd, cwr = set(c.rd), set(c.wr)
        for i in range(j - 1, max(-1, j - 64), -1):
            p = ins[i]
            if p.cls == 'label':
                continue
            if dist > W:
                break
            need = 0
            why = ''
            pwr = set(p.wr)
            raw = pwr & crd
            waw = pwr & cwr
            if p.cls == 'valu':
                vraw = {r for r in raw if r[0] in 'va'}
                sraw = {r for r in raw if r[0] in ('s', 'vcc')}
                if vraw and c.cls == 'mfma':
                    need, why = 2, 'valu->mfma'
                if vraw and c.dpp:
                    need, why = max(need, 2), 'valu->dpp'
                if vraw and c.op.startswith('v_permlane'):
                    need, why = max(need, 2), 'valu->permlane'
                if vraw and c.op in ('v_readfirstlane_b32', 'v_readlane_b32'):
                    need, why = max(need, 1), 'valu->readlane'
                if vraw and p.op in TRANS and c.cls == 'valu' and c.op not in TRANS:
                    need, why = max(need, 1), 'trans->valu'
                if sraw and c.cls == 'vmem':
                    need, why = max(need, 5), 'valu sgpr->vmem'
                if sraw and c.cls == 'valu':
                    need, why = max(need, 4 if c.op in ('v_readlane_b32', 'v_writelane_b32') else 2), 'valu sgpr->valu'
                if ('exec', 0) in pwr:
                    if c.cls == 'mfma' or c.op.startswith('v_permlane') or c.op in ('v_readfirstlane_b32', 'v_readlane_b32'):
                        need, why = max(need, 4), 'valu exec->'
                    if c.dpp:
                        need, why = max(need, 5), 'valu exec->dpp'
            if p.cls == 'salu' and ('m0', 0) in pwr and c.lds_dma:
                need, why = max(need, 1), 'm0->dma'
            if p.cls == 'mfma':
                big = p.passes == 8
                if c.cls == 'mfma':
                    cC = set(c.srcC)
                    ab = set(c.data[0]) | set(c.data[1])
                    if pwr & ab:
                        need, why = max(need, 12 if big else 8), 'mfma D->mfma AB'
                    if pwr & cC:
                        if list(p.wr) == list(c.srcC) and p.passes == c.passes:
                            pass
                        else:
                            need, why = max(need, 10 if big else 6), 'mfma D->mfma C overlap'
                    elif waw:
                        need, why = max(need, 10 if big else 6), 'mfma D->mfma D waw'
                elif c.cls in ('valu', 'ds', 'vmem'):
                    if raw or waw:
                        need, why = max(need, 12 if big else 8), 'mfma D->valu/mem'
                    if c.cls == 'valu' and set(p.srcC) & cwr:
                        need, why = max(need, 7 if big else 3), 'mfma C war'
            if p.wide_store and set(p.data) & cwr:
                need, why = max(need, 2), 'store data war'
            if need > dist:
                errs.append('%s: hazard %s need %d have %d:\n   [%d] %s\n   [%d] %s' % (name, why, need, dist, i, p.text, j, c.text))
            dist += p.ws
    return errs


class Kern:
    def __init__(self, name, nv=256, na=0, ns=96):
        self.name = name
        self.lines = []
        self.nv, self.na, self.ns = nv, na, ns
        self.lab = 0

    def e(self, text):
        for l in text.strip('\n').split('\n'):
            l = l.strip()
            if l == '' or l.startswith(';'):
                continue
            self.lines.append(Ins(l))

    def label(self, base):
        self.lab += 1
        return 'L_%s_%s_%d' % (self.name, base, self.lab)

    def text(self):
        out = []
        out.append('.globl %s' % self.name)
        out.append('.p2align 8')
        out.append('.type %s,@function' % self.name)
        out.append('%s:' % self.name)
        for i in self.lines:
            out.append(('' if i.cls == 'label' else '    ') + i.text)
        return '\n'.join(out) + '\n'

    def desc(self):
        acc = (self.nv + 3) // 4 * 4
        nfv = acc + self.na if self.na else self.nv
        return ('.p2align 6\n.amdhsa_kernel %s\n  .amdhsa_next_free_vgpr %d\n  .amdhsa_next_free_sgpr %d\n'
                '  .amdhsa_accum_offset %d\n  .amdhsa_group_segment_fixed_size 0\n  .amdhsa_kernarg_size 104\n'
                '  .amdhsa_user_sgpr_count 2\n  .amdhsa_user_sgpr_kernarg_segment_ptr 1\n'
                '  .amdhsa_system_sgpr_workgroup_id_x 1\n.end_amdhsa_kernel\n') % (self.name, nfv, self.ns, acc)

    def check(self):
        errs = check_hazards(self.lines, self.name)
        pos = {}
        for idx, i in enumerate(self.lines):
            if i.cls == 'label' and i.text.endswith(':'):
                pos[i.text[:-1]] = idx
        for idx, i in enumerate(self.lines):
            if i.op.startswith('s_cbranch') or i.op == 's_branch':
                tgt = i.text.split()[1]
                if tgt in pos:
                    t = pos[tgt]
                    seq = self.lines[max(0, idx - 40):idx + 1] + self.lines[t:t + 40]
                    errs += check_hazards(seq, self.name + '@' + tgt)
        for i in self.lines:
            for f, r in list(i.rd) + list(i.wr):
                if f == 'v' and r >= self.nv:
                    errs.append('%s: v%d out of range: %s' % (self.name, r, i.text))
                if f == 'a' and r >= self.na:
                    errs.append('%s: a%d out of range: %s' % (self.name, r, i.text))
                if f == 's' and r >= self.ns:
                    errs.append('%s: s%d out of range: %s' % (self.name, r, i.text))
        return sorted(set(errs))


def vr(f, a, n):
    return '%s[%d:%d]' % (f, a, a + n - 1) if n > 1 else '%s%d' % (f, a)
```

```python
import sys, struct, os
sys.path.insert(0, os.path.dirname(os.path.abspath(__file__)))
from asmlib import *

NAME = "recurrent_scan__mha_block_cached__mixer_s_mlp__prompt"

WS_XN, WS_XN2, WS_H, WS_X1 = 0x0, 0x240000, 0x480000, 0x6C0000
WS_ST, WS_CS3, WS_RS = 0x900000, 0x980000, 0x9C0000
WS_H2, WS_O, WS_P = 0x1000000, 0x3000000, 0x5000000
ACT = 2048 * 576 * 2

A_X, A_K, A_V, A_WQ, A_WO, A_BX, A_W1, A_W2, A_W3, A_W4, A_OUT, A_DBG, A_WS = [8 * i for i in range(13)]


def f2u(x):
    return struct.unpack('<I', struct.pack('<f', x))[0]


def hx(x):
    return '0x%x' % (x & 0xffffffff)


def srd(k, d, lo, hi, size, add_lo=None):
    if add_lo is None:
        k.e('s_mov_b32 s%d, s%d' % (d, lo))
        k.e('s_mov_b32 s%d, s%d' % (d + 1, hi))
    else:
        k.e('s_add_u32 s%d, s%d, %s' % (d, lo, add_lo))
        k.e('s_addc_u32 s%d, s%d, 0' % (d + 1, hi))
    k.e('s_mov_b32 s%d, %s' % (d + 2, size if isinstance(size, str) else hx(size)))
    k.e('s_mov_b32 s%d, 0x20000' % (d + 3))


def bf16r(k, dst, src, tmp=None):
    k.e('v_cvt_pk_bf16_f32 v%d, v%d, v%d' % (dst, src, src))
    k.e('v_lshlrev_b32 v%d, 16, v%d' % (dst, dst))


def gen_prep():
    k = Kern('prep_kernel', nv=128, ns=48)
    NLN = 128
    lab_cs, lab_end = k.label('cs'), k.label('end')
    k.e('s_cmp_ge_u32 s2, %d' % (NLN + 72))
    k.e('s_cbranch_scc1 %s' % lab_end)
    k.e('s_load_dwordx2 s[4:5], s[0:1], %d' % A_X)
    k.e('s_load_dwordx2 s[6:7], s[0:1], %d' % A_WS)
    k.e('s_load_dwordx2 s[28:29], s[0:1], %d' % A_W3)
    k.e('s_waitcnt lgkmcnt(0)')
    srd(k, 8, 4, 5, ACT)
    srd(k, 12, 6, 7, 2 * ACT)
    srd(k, 16, 28, 29, 576 * 9216)
    srd(k, 20, 6, 7, 16 * 9216, hx(WS_CS3))
    k.e('s_cmp_ge_u32 s2, %d' % NLN)
    k.e('s_cbranch_scc1 %s' % lab_cs)
    k.e('s_lshl_b32 s3, s2, 4')
    k.e('v_lshrrev_b32 v1, 4, v0')
    k.e('v_add_u32 v1, s3, v1')
    k.e('v_and_b32 v2, 15, v0')
    k.e('v_mul_u32_u24 v3, 1152, v1')
    k.e('v_lshl_add_u32 v3, v2, 3, v3')
    X = 16
    F = 40
    for i in range(9):
        k.e('buffer_load_dwordx2 v[%d:%d], v3, s[8:11], 0 offen offset:%d' % (X + 2 * i, X + 2 * i + 1, 128 * i))
    k.e('v_lshrrev_b32 v4, 4, v1')
    k.e('v_mul_u32_u24 v4, 18432, v4')
    k.e('v_lshrrev_b32 v5, 3, v2')
    k.e('v_lshl_add_u32 v4, v5, 10, v4')
    k.e('v_and_b32 v5, 15, v1')
    k.e('v_lshl_add_u32 v4, v5, 4, v4')
    k.e('v_and_b32 v5, 3, v2')
    k.e('v_lshl_add_u32 v4, v5, 8, v4')
    k.e('v_bfe_u32 v5, v2, 2, 1')
    k.e('v_lshl_add_u32 v4, v5, 3, v4')
    for i in range(9):
        k.e('s_mov_b32 s%d, %d' % (30 + i, 2048 * i))
    k.e('v_add_u32 v6, %s, v4' % hx(WS_XN2))
    k.e('s_waitcnt vmcnt(0)')

    def red16(r, t):
        for mod in ('quad_perm:[1,0,3,2]', 'quad_perm:[2,3,0,1]', 'row_half_mirror', 'row_mirror'):
            k.e('s_nop 1')
            k.e('v_add_f32_dpp v%d, v%d, v%d %s row_mask:0xf bank_mask:0xf' % (r, r, r, mod))

    def unpack():
        for p in range(18):
            k.e('v_lshlrev_b32 v%d, 16, v%d' % (F + 2 * p, X + p))
            k.e('v_and_b32 v%d, 0xffff0000, v%d' % (F + 2 * p + 1, X + p))

    def ln(store_v):
        unpack()
        k.e('v_add_f32 v8, v%d, v%d' % (F, F + 1))
        k.e('v_add_f32 v9, v%d, v%d' % (F + 2, F + 3))
        for e in range(4, 36, 2):
            k.e('v_add_f32 v8, v8, v%d' % (F + e))
            k.e('v_add_f32 v9, v9, v%d' % (F + e + 1))
        k.e('v_add_f32 v8, v8, v9')
        red16(8, 9)
        k.e('v_mul_f32 v8, %s, v8' % hx(f2u(1.0 / 576.0)))
        k.e('v_mov_b32 v10, 0')
        k.e('v_mov_b32 v11, 0')
        for e in range(0, 36, 2):
            k.e('v_sub_f32 v12, v%d, v8' % (F + e))
            k.e('v_sub_f32 v13, v%d, v8' % (F + e + 1))
            k.e('v_fmac_f32 v10, v12, v12')
            k.e('v_fmac_f32 v11, v13, v13')
        k.e('v_add_f32 v10, v10, v11')
        red16(10, 9)
        k.e('v_mul_f32 v10, %s, v10' % hx(f2u(1.0 / 576.0)))
        bf16r(k, 8, 8)
        bf16r(k, 10, 10)
        k.e('v_add_f32 v10, %s, v10' % hx(f2u(1e-5)))
        bf16r(k, 10, 10)
        k.e('v_sqrt_f32 v10, v10')
        k.e('s_nop 0')
        bf16r(k, 10, 10)
        k.e('v_rcp_f32 v10, v10')
        for p in range(18):
            a, b = F + 2 * p, F + 2 * p + 1
            k.e('v_sub_f32 v%d, v%d, v8' % (a, a))
            k.e('v_sub_f32 v%d, v%d, v8' % (b, b))
            k.e('v_cvt_pk_bf16_f32 v12, v%d, v%d' % (a, b))
            k.e('v_lshlrev_b32 v%d, 16, v12' % a)
            k.e('v_and_b32 v%d, 0xffff0000, v12' % b)
            k.e('v_mul_f32 v%d, v%d, v10' % (a, a))
            k.e('v_mul_f32 v%d, v%d, v10' % (b, b))
            k.e('v_cvt_pk_bf16_f32 v%d, v%d, v%d' % (store_v + p, a, b))

    ln(X)
    for i in range(9):
        k.e('buffer_store_dwordx2 v[%d:%d], v4, s[12:15], s%d offen' % (X + 2 * i, X + 2 * i + 1, 30 + i))
    ln(80)
    for i in range(9):
        k.e('buffer_store_dwordx2 v[%d:%d], v6, s[12:15], s%d offen' % (80 + 2 * i, 80 + 2 * i + 1, 30 + i))
    k.e('s_endpgm')
    k.e('%s:' % lab_cs)
    k.e('s_sub_u32 s3, s2, %d' % NLN)
    k.e('s_lshl_b32 s3, s3, 7')
    k.e('v_and_b32 v1, 7, v0')
    k.e('v_lshrrev_b32 v2, 3, v0')
    k.e('v_mul_u32_u24 v3, 9216, v2')
    k.e('v_lshl_add_u32 v3, v1, 4, v3')
    k.e('v_add_u32 v3, s3, v3')
    k.e('s_mov_b32 s30, 0')
    for i in range(18):
        k.e('buffer_load_dwordx4 v[%d:%d], v3, s[16:19], s30 offen' % (16 + 4 * i, 19 + 4 * i))
        k.e('s_add_u32 s30, s30, %d' % (32 * 9216))
    for e in range(8):
        k.e('v_mov_b32 v%d, 0' % (96 + e))
    for i in range(18):
        k.e('s_waitcnt vmcnt(%d)' % (17 - i))
        for p in range(4):
            k.e('v_lshlrev_b32 v4, 16, v%d' % (16 + 4 * i + p))
            k.e('v_and_b32 v5, 0xffff0000, v%d' % (16 + 4 * i + p))
            k.e('v_add_f32 v%d, v%d, v4' % (96 + 2 * p, 96 + 2 * p))
            k.e('v_add_f32 v%d, v%d, v5' % (97 + 2 * p, 97 + 2 * p))
    k.e('v_lshlrev_b32 v6, 5, v0')
    k.e('ds_write_b128 v6, v[96:99]')
    k.e('ds_write_b128 v6, v[100:103] offset:16')
    k.e('v_add_u32 v7, 3, v2')
    k.e('v_mul_u32_u24 v7, 9216, v7')
    k.e('v_lshl_add_u32 v7, v1, 4, v7')
    k.e('v_add_u32 v7, s3, v7')
    for e in range(4):
        k.e('v_mov_b32 v%d, 0' % (104 + e))
    k.e('buffer_store_dwordx4 v[104:107], v7, s[20:23], 0 offen')
    k.e('s_waitcnt lgkmcnt(0)')
    k.e('s_barrier')
    k.e('v_cmp_gt_u32 vcc, 64, v0')
    k.e('s_and_saveexec_b64 s[32:33], vcc')
    k.e('s_cbranch_execz %s' % lab_end)
    k.e('v_lshlrev_b32 v6, 2, v0')
    for r in range(32):
        k.e('ds_read_b32 v%d, v6 offset:%d' % (16 + r, 256 * r))
    k.e('s_waitcnt lgkmcnt(0)')
    for st in (16, 8, 4, 2, 1):
        for r in range(st):
            k.e('v_add_f32 v%d, v%d, v%d' % (16 + r, 16 + r, 16 + r + st))
    k.e('v_cvt_pk_bf16_f32 v8, v16, v16')
    k.e('v_lshlrev_b32 v9, 16, v8')
    k.e('v_sub_f32 v9, v16, v9')
    k.e('v_cvt_pk_bf16_f32 v9, v9, v9')
    k.e('v_lshlrev_b32 v6, 1, v0')
    k.e('v_add_u32 v6, s3, v6')
    k.e('s_mov_b32 s30, 9216')
    k.e('s_mov_b32 s31, 18432')
    k.e('buffer_store_short v8, v6, s[20:23], 0 offen')
    k.e('buffer_store_short v9, v6, s[20:23], s30 offen')
    k.e('buffer_store_short v8, v6, s[20:23], s31 offen')
    k.e('%s:' % lab_end)
    k.e('s_endpgm')
    return k, (NLN + 72, 256, 8192)


MF = 'v_mfma_f32_32x32x16_bf16'


def lane_consts(k, vl, vt0, vt1, vt2):
    pass


STAMP = os.environ.get('STAMP', '') != ''
WS_TS = 0x8000000


def stamp(k, n, real=False):
    if STAMP and not real:
        k.e('s_memtime s[%d:%d]' % (64 + 2 * n, 65 + 2 * n))
        k.e('s_memrealtime s[%d:%d]' % (76 + 2 * n, 77 + 2 * n))


def stamp_store(k, nst, ws_lo, wave_sgpr):
    if not STAMP:
        return
    k.e('s_waitcnt lgkmcnt(0)')
    srd(k, 92, ws_lo, ws_lo + 1, 0x100000, hx(WS_TS))
    k.e('s_lshl_b32 s3, s2, 2')
    k.e('s_add_u32 s3, s3, s%d' % wave_sgpr)
    k.e('s_lshl_b32 s3, s3, 6')
    k.e('s_mov_b64 exec, 1')
    k.e('v_mov_b32 v1, 0')
    for n in range(nst):
        k.e('v_mov_b32 v2, s%d' % (64 + 2 * n))
        k.e('buffer_store_dword v2, v1, s[92:95], s3 offen offset:%d' % (4 * n))
        k.e('s_nop 0')


def build(kernels, path):
    hdr = open(os.path.join(os.path.dirname(os.path.abspath(__file__)), '..', 'cdna_kernels', NAME + '.s.ref')).read().split('\n')
    out = []
    for l in hdr:
        if l.startswith(';') and '@launch' not in l and 'Override launch' not in l and 'grid=ceil' not in l:
            out.append(l)
        elif not l.startswith(';'):
            break
    for k, (g, b, lds) in kernels:
        out.append('; @launch kernel=%s grid=(%d,1,1) block=(%d,1,1) lds=%d' % (k.name, g, b, lds))
    out.append('.amdgcn_target "amdgcn-amd-amdhsa--gfx950"')
    out.append('.text')
    seen = set()
    errs = []
    for k, _ in kernels:
        if k.name in seen:
            continue
        seen.add(k.name)
        errs += k.check()
        out.append(k.text())
    out.append('.section .rodata,"a"')
    seen = set()
    for k, _ in kernels:
        if k.name in seen:
            continue
        seen.add(k.name)
        out.append(k.desc())
    open(path, 'w').write('\n'.join(out))
    for e in errs[:12]:
        print(e)
    print('%d hazard messages' % len(errs))


if __name__ == '__main__':
    ks = [gen_prep(), gen_attn()]
    build(ks, sys.argv[1] if len(sys.argv) > 1 else 'k.s')
```
